```python
import torch

def _softmax(x, axis=-1):
    return torch.softmax(x, dim=axis)
def _gelu(x):
    return torch.nn.functional.gelu(x, approximate="tanh")
def _silu(x):
    return torch.nn.functional.silu(x)
def _sigmoid(x):
    return torch.sigmoid(x)
def _layernorm(x, axis=-1, eps=1e-5):
    m = x.mean(dim=axis, keepdim=True)
    v = x.var(dim=axis, keepdim=True, unbiased=False)
    return (x - m) / torch.sqrt(v + eps)
def _scatter_add(tgt, idx, src, axis=0):
    return tgt.clone().index_add_(axis, idx, src)
def _segment_sum(src, seg, n):
    out = torch.zeros((n,) + src.shape[1:], dtype=src.dtype)
    return out.index_add_(0, seg, src)
def _pad(x, pw):
    flat = tuple(v for pair in reversed(pw) for v in pair)
    return torch.nn.functional.pad(x, flat)

kernel_name = 'standalone__normalfloat_lut_nf4__prompt'

def setup_inputs():

    _w = (lambda a: (lambda t: t.to(torch.bfloat16) if t.is_floating_point() else t)(torch.as_tensor(a)))
    B, S, D, F = 1, 2048, 576, 4608
    G = 128 if 128 > 0 else D
    D = (D // G) * G
    ng = D // G
    qw = torch.randint(0, 16, (D, F)).to(torch.int64)
    return {
        "x": _w((lambda *s: torch.randn(*s, dtype=torch.bfloat16) * 0.05)(B, S, D)),
        "qw": _w(qw),
        "absmax": _w(torch.abs((lambda *s: torch.randn(*s, dtype=torch.bfloat16) * 0.05)(ng, F)).to(float) + 0.01),
    }

def reference(x, qw, absmax):
    NF4 = torch.as_tensor([
        -1.0, -0.6961928009986877, -0.5250730514526367, -0.39491748809814453,
        -0.28444138169288635, -0.18477343022823334, -0.09105003625154495, 0.0,
        0.07958029955625534, 0.16093020141124725, 0.24611230194568634,
        0.33791524171829224, 0.44070982933044434, 0.5626170039176941,
        0.7229568362236023, 1.0,
    ])
    D, F = qw.shape[0], qw.shape[1]
    ng = absmax.shape[0]
    G = D // ng
    w = (lambda x, dt: x.to(dt))(NF4[qw], x.dtype)
    s = (lambda x, n, axis: torch.repeat_interleave(x, n, dim=axis))(absmax, G, axis=0)
    w = w * s
    return torch.einsum("bsd,df->bsf", x, w)
```

```python
from asmlib import *
import sys
def pro(name):
    return f'''
    s_memrealtime s[40:41]
    s_load_dwordx4 s[4:7], s[0:1], 0
    s_load_dwordx2 s[32:33], s[0:1], 24
    s_load_dwordx2 s[34:35], s[0:1], 40
    s_getreg_b32 s48, hwreg(HW_REG_XCC_ID)
    v_and_b32 v1, 63, v0            ; lane
    v_lshrrev_b32 v2, 6, v0         ; wave
    s_nop 0
    v_readfirstlane_b32 s20, v2
    s_cmp_ge_u32 s2, 256
    s_cbranch_scc1 Lend_{name}
    s_waitcnt lgkmcnt(0)
    s_mov_b32 s8, s4
    s_and_b32 s9, s5, 0xffff
    s_mov_b32 s10, {2048*1024}
    s_mov_b32 s11, 0x20000
    s_mov_b32 s12, s6
    s_and_b32 s13, s7, 0xffff
    s_mov_b32 s14, {512*4608*4}
    s_mov_b32 s15, 0x20000
    s_mov_b32 s16, s32
    s_and_b32 s17, s33, 0xffff
    s_mov_b32 s18, {2048*4608*2}
    s_mov_b32 s19, 0x20000
    s_mov_b32 s36, s34
    s_and_b32 s37, s35, 0xffff
    s_mov_b32 s38, 0x100000
    s_mov_b32 s39, 0x20000
    s_and_b32 s21, s2, 7
    s_lshl_b32 s21, s21, 2
    s_lshr_b32 s22, s2, 6
    s_add_u32 s21, s21, s22            ; ntile 0..31
    s_lshr_b32 s22, s2, 3
    s_and_b32 s22, s22, 7              ; mtile 0..7
    s_mov_b64 s[42:43], s[40:41]
'''
def epi(name):
    return f'''
    s_waitcnt vmcnt(0)
    s_barrier
    s_memrealtime s[44:45]
    s_waitcnt lgkmcnt(0)
    v_mov_b32 v4, s40
    v_mov_b32 v5, s42
    v_mov_b32 v6, s44
    v_mov_b32 v7, s48
    s_lshl_b32 s28, s2, 4
    v_mov_b32 v8, s28
    v_cmp_eq_u32 vcc, 0, v0
    s_and_saveexec_b64 s[30:31], vcc
    s_cbranch_execz Lend_{name}
    buffer_store_dwordx4 v[4:7], v8, s[36:39], 0 offen
Lend_{name}:
'''
def linear(name, q=True, x=True, flag='', stamp=True):
    b = '    v_lshlrev_b32 v3, 4, v0\n    s_mul_i32 s24, s2, 36864\n    s_lshl_b32 s25, s2, 13\n'
    r = 20
    if q:
        for j in range(9):
            b += f'    s_add_u32 s27, s24, {j*4096}\n    buffer_load_dwordx4 v[{r}:{r+3}], v3, s[12:15], s27 offen {flag}\n'; r += 4
    if x:
        for j in range(2):
            b += f'    s_add_u32 s27, s25, {j*4096}\n    buffer_load_dwordx4 v[{r}:{r+3}], v3, s[8:11], s27 offen {flag}\n'; r += 4
    return b
def xcd_pref(name):
    b = '''
    s_lshr_b32 s24, s2, 3
    s_mul_i32 s24, s24, 294912     ; 16 rows * 18432
    s_and_b32 s25, s2, 7
    s_mul_i32 s25, s25, 2304
    s_add_u32 s24, s24, s25
'''
    r = 20
    for j in range(9):
        b += f'''
    v_add_u32 v4, {j*256}, v0
    v_mul_u32_u24 v5, 7282, v4
    v_lshrrev_b32 v5, 20, v5           ; /144
    v_mul_u32_u24 v6, 144, v5
    v_sub_u32 v6, v4, v6
    v_mul_u32_u24 v5, 18432, v5
    v_lshl_add_u32 v7, v6, 4, v5
    buffer_load_dwordx4 v[{r}:{r+3}], v7, s[12:15], s24 offen
'''
        r += 4
    b += '    v_lshlrev_b32 v3, 4, v0\n    s_lshr_b32 s25, s2, 3\n    s_lshl_b32 s25, s25, 16\n'
    for j in range(16):
        b += f'    s_add_u32 s27, s25, {j*4096}\n    buffer_load_dwordx4 v[{r}:{r+3}], v3, s[8:11], s27 offen\n'; r += 4
    return b
def tile(name, q=True, x=True, depth=32, rot=False, xrow=False):
    b = f'''
    v_lshrrev_b32 v3, 3, v1
    v_lshlrev_b32 v3, 10, v3
    v_and_b32 v4, 7, v1
    v_lshl_add_u32 v3, v4, 4, v3
    s_lshl_b32 s24, s22, 18
    s_mul_i32 s25, s20, {8*8*1024}
    s_add_u32 s24, s24, s25
    s_mul_i32 s26, s21, 576            ; q base
'''
    if xrow:
        b += '    v_lshlrev_b32 v3, 4, v1\n'
    for j in range(9):
        b += f'''
    v_add_u32 v4, {j*64}, v1
    v_mul_u32_u24 v5, 1821, v4
    v_lshrrev_b32 v5, 16, v5           ; /36
    v_mul_u32_u24 v6, 36, v5
    v_sub_u32 v6, v4, v6
    v_mul_u32_u24 v5, 18432, v5
    v_lshl_add_u32 v{8+j}, v6, 4, v5
'''
    b += f'''
    s_mul_i32 s25, s20, {16*18432}
    s_add_u32 s26, s26, s25
    s_mul_i32 s23, s20, {34*1024}
    s_mov_b32 s29, 0
Lk_{name}:
'''
    if rot:
        b += '    s_add_u32 s49, s29, s22\n    s_and_b32 s49, s49, 7\n'
    else:
        b += '    s_mov_b32 s49, s29\n'
    b += f'''
    s_mul_i32 s28, s49, {64*18432}
    s_add_u32 s28, s28, s26
    s_lshl_b32 s27, s49, {13 if xrow else 7}
    s_add_u32 s27, s27, s24
    s_and_b32 s50, s29, 1
    s_mul_i32 s50, s50, {17*1024}
    s_add_u32 s50, s50, s23
'''
    c = 0
    for j in range(9):
        if q:
            b += f'    s_add_u32 m0, s50, {c*1024}\n    s_nop 0\n    buffer_load_dwordx4 v{8+j}, s[12:15], s28 offen lds\n    s_waitcnt vmcnt({depth-1})\n'; c += 1
        if x and j < 8:
            b += f'    s_add_u32 m0, s50, {c*1024}\n    s_nop 0\n    buffer_load_dwordx4 v3, s[8:11], s27 offen lds\n    s_add_u32 s27, s27, {1024 if xrow else 8192}\n    s_waitcnt vmcnt({depth-1})\n'; c += 1
    b += f'''
    s_add_u32 s29, s29, 1
    s_cmp_lt_u32 s29, 8
    s_cbranch_scc1 Lk_{name}
'''
    return b
MID = '    s_waitcnt vmcnt(0)\n    s_memrealtime s[42:43]\n'
ks = []; runs = []
def add(n, f):
    n += '_kernel'
    ks.append((n, pro(n) + f(n) + epi(n), 128))
    runs.append((n, 256, 4*34*1024))
add('empty', lambda n: '')
add('lin', lambda n: linear(n))
add('lin_q', lambda n: linear(n, x=False))
add('lin_x', lambda n: linear(n, q=False))
add('lin_nt', lambda n: linear(n, flag='nt'))
add('xcdpref', lambda n: xcd_pref(n))
add('tile', lambda n: tile(n))
add('tile_q', lambda n: tile(n, x=False))
add('tile_x', lambda n: tile(n, q=False))
add('tile_xrow', lambda n: tile(n, q=False, xrow=True))
add('tile_rot', lambda n: tile(n, rot=True))
add('tile_q_rot', lambda n: tile(n, x=False, rot=True))
add('lin_then_tile', lambda n: linear(n) + MID + tile(n))
add('lin_nowait_tile', lambda n: linear(n) + tile(n))
add('xcdpref_then_tile', lambda n: xcd_pref(n) + MID + tile(n))
add('xcdpref_nowait_tile', lambda n: xcd_pref(n) + tile(n))
build(ks, 'mb_cold')
with open('stamps2.py', 'w') as f:
    f.write('''import numpy as np
a=np.fromfile('ws.bin',dtype=np.uint32).reshape(-1,4).astype(np.int64)
x=a[:,3]&15
d1=(a[:,1]-a[:,0])/100.; d2=(a[:,2]-a[:,0])/100.
sk=[(a[x==i,0].max()-a[x==i,0].min())/100. for i in range(8) if (x==i).any()]
xs=[(a[x==i,0].min()-a[:,0].min())/100. for i in range(8) if (x==i).any()]
span=[(a[x==i,2].max()-a[x==i,0].min())/100. for i in range(8) if (x==i).any()]
print(' mid med %.2f max %.2f | dur med %.2f max %.2f | inXCD start skew max %.2f | xcd span max %.2f | xcd offs %s'%(np.median(d1),d1.max(),np.median(d2),d2.max(),max(sk),max(span),' '.join('%.1f'%v for v in xs)))
''')
with open('mb_cold.sh', 'w') as f:
    for mode in ('--coldmode 1', '--coldmode 3', '--coldmode 2', ''):
        f.write(f'echo "=== {mode}"\n')
        for n, bx, lds in runs:
            f.write(f'echo -n "{n}: "; timeout 30 ./runner mb_cold.co {n}:256:{bx}:{lds} --reps 9 --ws 4096 {mode} | tr "\\n" " "; python3 stamps2.py\n')
```

```python
import struct
import numpy as np
NF4 = [-1.0, -0.6961928009986877, -0.5250730514526367, -0.39491748809814453,
       -0.28444138169288635, -0.18477343022823334, -0.09105003625154495, 0.0,
       0.07958029955625534, 0.16093020141124725, 0.24611230194568634,
       0.33791524171829224, 0.44070982933044434, 0.5626170039176941,
       0.7229568362236023, 1.0]
def bf16_bits(f):
    u = struct.unpack('<I', struct.pack('<f', f))[0]
    return ((u + 0x7FFF + ((u >> 16) & 1)) >> 16) & 0xFFFF
NF4B = [bf16_bits(v) for v in NF4]
def simple_body(name):
    b = f'''
    s_cmp_ge_u32 s2, 2304
    s_cbranch_scc1 Lend_{name}
    s_load_dwordx4 s[4:7], s[0:1], 0
    s_load_dwordx4 s[32:35], s[0:1], 16
    v_and_b32 v1, 63, v0
    v_lshrrev_b32 v2, 6, v0
    s_nop 0
    v_readfirstlane_b32 s20, v2
    s_and_b32 s22, s2, 31              ; mtile
    s_lshr_b32 s21, s2, 5              ; ntile
'''
    b += '    v_mov_b32 v3, 0\n'
    for i, v in enumerate(NF4B):
        b += f'    s_mov_b32 s23, 0x{v<<16:08x}\n    v_writelane_b32 v3, s23, {i}\n'
    b += f'''
    v_lshlrev_b32 v4, 2, v1
    ds_write_b32 v4, v3
    s_waitcnt lgkmcnt(0)
    s_mov_b32 s8, s4
    s_and_b32 s9, s5, 0xffff
    s_mov_b32 s10, {2048*1024}
    s_mov_b32 s11, 0x20000
    s_mov_b32 s12, s6
    s_and_b32 s13, s7, 0xffff
    s_mov_b32 s14, {512*4608*4}
    s_mov_b32 s15, 0x20000
    s_mov_b32 s16, s34
    s_and_b32 s17, s35, 0xffff
    s_mov_b32 s18, {2048*4608*2}
    s_mov_b32 s19, 0x20000
    s_mov_b32 s36, s32
    s_and_b32 s37, s33, 0xffff
    s_mov_b32 s38, {4*4608*2}
    s_mov_b32 s39, 0x20000
    s_barrier
    v_and_b32 v5, 15, v1               ; c
    v_lshrrev_b32 v6, 4, v1            ; slab
    s_lshl_b32 s24, s21, 6
    s_lshl_b32 s25, s20, 4
    s_add_u32 s24, s24, s25
    v_add_u32 v7, s24, v5              ; column n
    v_lshlrev_b32 v8, 2, v7
    v_mul_u32_u24 v9, {8*18432}, v6
    v_add_u32 v8, v8, v9               ; q offset
    v_lshlrev_b32 v9, 1, v7
    s_lshl_b32 s25, s22, 6
    v_add_u32 v10, s25, v5
    v_lshlrev_b32 v10, 10, v10
    v_lshl_add_u32 v10, v6, 4, v10     ; x offset
'''
    for i in range(16): b += f'    v_mov_b32 v{64+i}, 0\n'
    b += f'''
    s_mov_b32 s26, 0                   ; k step 0..15
Lk_{name}:
    s_lshr_b32 s27, s26, 2
    s_mul_i32 s27, s27, 9216
    buffer_load_ushort v11, v9, s[36:39], s27 offen
    s_mul_i32 s28, s26, {32*18432}
'''
    for j in range(8):
        b += f'    buffer_load_dword v{16+j}, v8, s[12:15], s28 offen\n    s_add_u32 s28, s28, 18432\n'
    b += '    s_lshl_b32 s29, s26, 6\n'
    for t in range(4):
        b += f'    buffer_load_dwordx4 v[{32+4*t}:{35+4*t}], v10, s[8:11], s29 offen\n    s_add_u32 s29, s29, 16384\n'
    b += '    s_waitcnt vmcnt(4)\n    v_lshlrev_b32 v11, 16, v11\n'
    for j in range(8):
        b += f'    v_lshlrev_b32 v{16+j}, 2, v{16+j}\n    ds_read_b32 v{16+j}, v{16+j}\n'
    b += '    s_waitcnt lgkmcnt(0)\n'
    for j in range(8):
        b += f'    v_mul_f32 v{16+j}, v{16+j}, v11\n'
    for j in range(4):
        b += f'    v_cvt_pk_bf16_f32 v{24+j}, v{16+2*j}, v{17+2*j}\n'
    b += '    s_waitcnt vmcnt(0)\n    s_nop 1\n'
    for t in range(4):
        b += f'    v_mfma_f32_16x16x32_bf16 v[{64+4*t}:{67+4*t}], v[24:27], v[{32+4*t}:{35+4*t}], v[{64+4*t}:{67+4*t}]\n'
    b += f'''
    s_add_u32 s26, s26, 1
    s_cmp_lt_u32 s26, 16
    s_cbranch_scc1 Lk_{name}
    s_nop 7
    s_nop 7
    v_add_u32 v10, s25, v5             ; row m
    v_mul_u32_u24 v10, 9216, v10
    v_lshl_add_u32 v10, v6, 3, v10
    s_lshl_b32 s24, s24, 1
'''
    for t in range(4):
        b += f'''    v_cvt_pk_bf16_f32 v{32+2*t}, v{64+4*t}, v{65+4*t}
    v_cvt_pk_bf16_f32 v{33+2*t}, v{66+4*t}, v{67+4*t}
    buffer_store_dwordx2 v[{32+2*t}:{33+2*t}], v10, s[16:19], s24 offen
    s_add_u32 s24, s24, {16*9216}
'''
    b += f'Lend_{name}:\n'
    return b
if __name__ == '__main__':
    from asmlib import *
    build([('simple_kernel', simple_body('simple_kernel'), 80)], 'simple')
    print([hex(v) for v in NF4B])
```

```python
import re, importlib, sys
from asmlib import *
import simple
import mb_cold as mc
def mk(fname, launches):
    names = []
    hdr = ''
    for n in launches:
        if n == 'simple':
            hdr += '; @launch kernel=simple_kernel grid=(2304,1,1) block=(256,1,1) lds=256\n'
        else:
            hdr += f'; @launch kernel={n}_kernel grid=(256,1,1) block=(256,1,1) lds={4*34*1024}\n'
        if n not in names: names.append(n)
    s = hdr + HEADER
    for n in names:
        if n == 'simple':
            s += kernel_text('simple_kernel', simple.simple_body('simple_kernel'), 80)
        else:
            k = [k for k in mc.ks if k[0] == n + '_kernel'][0]
            s += kernel_text(*k)
    open(fname, 'w').write(s)
mk('cal_A.s', ['simple'])
mk('cal_B.s', ['lin', 'simple'])
mk('cal_C.s', ['tile', 'simple'])
mk('cal_D.s', ['lin_nt', 'simple'])
mk('cal_E.s', ['empty', 'simple'])
mk('cal_F.s', ['lin', 'lin', 'simple'])
```

```python
import re, importlib, sys
from asmlib import *
import simple
import mb_cold as mc
def report_body(name, a, b_, shift):
    return f'''
    s_cmp_ge_u32 s2, 1
    s_cbranch_scc1 Lend_{name}
    s_load_dwordx2 s[34:35], s[0:1], 40
    v_mov_b32 v10, 0
    v_mov_b32 v11, 0
    ds_write_b32 v10, v11
    s_waitcnt lgkmcnt(0)
    s_mov_b32 s36, s34
    s_and_b32 s37, s35, 0xffff
    s_mov_b32 s38, 0x100000
    s_mov_b32 s39, 0x20000
    v_lshlrev_b32 v1, 4, v0
    buffer_load_dwordx4 v[4:7], v1, s[36:39], 0 offen
    s_barrier
    s_waitcnt vmcnt(0)
    v_sub_u32 v8, v{4+b_}, v{4+a}
    v_min_u32 v8, 5000, v8
    ds_add_u32 v10, v8
    s_waitcnt lgkmcnt(0)
    s_barrier
    ds_read_b32 v8, v10
    s_waitcnt lgkmcnt(0)
    v_readfirstlane_b32 s20, v8
    s_lshr_b32 s20, s20, {shift}
    s_memrealtime s[40:41]
    s_waitcnt lgkmcnt(0)
    s_add_u32 s20, s20, s40
Lspin_{name}:
    s_memrealtime s[42:43]
    s_waitcnt lgkmcnt(0)
    s_sub_u32 s21, s42, s20
    s_cmp_lt_i32 s21, 0
    s_cbranch_scc1 Lspin_{name}
Lend_{name}:
'''
def clock_probe(n):
    return f'''
    s_memtime s[50:51]
    s_waitcnt lgkmcnt(0)
    s_add_u32 s50, s50, 24000
Lc_{n}:
    s_memtime s[52:53]
    s_waitcnt lgkmcnt(0)
    s_sub_u32 s54, s52, s50
    s_cmp_lt_i32 s54, 0
    s_cbranch_scc1 Lc_{n}
'''
def mfma_probe(n, iters=36):
    b = ''
    for i in range(16, 48):
        b += f'    v_mul_u32_u24 v{i}, {0x3f1+i*37}, v0\n    v_and_b32 v{i}, 0x3fff3fff, v{i}\n    v_or_b32 v{i}, 0x30003000, v{i}\n'
        b += f'    v_mul_lo_u32 v60, v{i}, v{i}\n    v_and_b32 v60, 0x80ff80ff, v60\n    v_xor_b32 v{i}, v60, v{i}\n'
    for i in range(64, 128): b += f'    v_mov_b32 v{i}, 0\n'
    b += f'    s_barrier\n    s_memrealtime s[40:41]\n    s_mov_b32 s50, 0\nLm_{n}:\n'
    for i in range(16):
        b += f'    v_mfma_f32_16x16x32_bf16 v[{64+4*i}:{67+4*i}], v[{16+4*(i&3)}:{19+4*(i&3)}], v[{32+4*(i>>2)}:{35+4*(i>>2)}], v[{64+4*i}:{67+4*i}]\n'
    b += f'    s_add_u32 s50, s50, 1\n    s_cmp_lt_u32 s50, {iters}\n    s_cbranch_scc1 Lm_{n}\n'
    return b
extra = {}
for n, f in (('clk', clock_probe), ('mfma', mfma_probe)):
    nn = n + '_kernel'
    extra[n] = (nn, mc.pro(nn) + f(nn) + mc.epi(nn), 128)
def mk(fname, launches):
    names = []
    hdr = ''
    for n in launches:
        if n == 'simple':
            hdr += '; @launch kernel=simple_kernel grid=(2304,1,1) block=(256,1,1) lds=256\n'
        elif n == 'report':
            hdr += '; @launch kernel=report_kernel grid=(1,1,1) block=(256,1,1) lds=256\n'
        else:
            hdr += f'; @launch kernel={n}_kernel grid=(256,1,1) block=(256,1,1) lds={4*34*1024}\n'
        if n not in names: names.append(n)
    s = hdr + HEADER
    for n in names:
        if n == 'simple':
            s += kernel_text('simple_kernel', simple.simple_body('simple_kernel'), 80)
        elif n == 'report':
            s += kernel_text('report_kernel', report_body('report_kernel', 0, 2, 4), 16)
        elif n in extra:
            s += kernel_text(*extra[n])
        else:
            k = [k for k in mc.ks if k[0] == n + '_kernel'][0]
            s += kernel_text(*k)
    open(fname, 'w').write(s)
    assemble(s, fname[:-2])
for i, p in enumerate(sys.argv[1:]):
    mk(f'cal_{i}.s', [p, 'report', 'simple'])
```

```python
import sys
sys.path.insert(0, 'bench'); sys.path.insert(0, 'gen')
import asmlib, importlib
def report_body(name, a, b_, mode, nwg, stride, mult):
    op = 'ds_add_u32' if mode == 'avg' else 'ds_max_u32'
    return f'''
    s_cmp_ge_u32 s2, 1
    s_cbranch_scc1 Lend_{name}
    s_load_dwordx2 s[34:35], s[0:1], 40
    v_mov_b32 v10, 0
    v_mov_b32 v11, 0
    ds_write_b32 v10, v11
    s_waitcnt lgkmcnt(0)
    s_mov_b32 s36, s34
    s_and_b32 s37, s35, 0xffff
    s_mov_b32 s38, {nwg*stride}
    s_mov_b32 s39, 0x20000
    v_mul_u32_u24 v1, {stride}, v0
    buffer_load_dword v4, v1, s[36:39], 0 offen offset:{4*a}
    buffer_load_dword v5, v1, s[36:39], 0 offen offset:{4*b_}
    s_barrier
    s_waitcnt vmcnt(0)
    v_sub_u32 v8, v5, v4
    v_min_u32 v8, 5000, v8
    {op} v10, v8
    s_waitcnt lgkmcnt(0)
    s_barrier
    ds_read_b32 v8, v10
    s_waitcnt lgkmcnt(0)
    v_readfirstlane_b32 s20, v8
    s_mul_i32 s20, s20, {mult}
    s_lshr_b32 s20, s20, {8 if mode == 'avg' else 0}
    s_memrealtime s[40:41]
    s_waitcnt lgkmcnt(0)
    s_add_u32 s20, s20, s40
Lspin_{name}:
    s_memrealtime s[42:43]
    s_waitcnt lgkmcnt(0)
    s_sub_u32 s21, s42, s20
    s_cmp_lt_i32 s21, 0
    s_cbranch_scc1 Lspin_{name}
Lend_{name}:
'''
def mk(fname, g, kw, a, b, mode, mult=16):
    lines, lds = g.gen(g.make_cfg(**dict(kw, stamps=True)))
    grid = getattr(g, 'GRID', 252); blk = getattr(g, 'BLOCK', 256)
    s = f'; @launch kernel=main_kernel grid=({grid},1,1) block=({blk},1,1) lds={lds}\n; @launch kernel=report_kernel grid=(1,1,1) block=(256,1,1) lds=256\n'
    s += asmlib.HEADER + g.kernel_text('main_kernel', lines) + asmlib.kernel_text('report_kernel', report_body('report_kernel', a, b, mode, grid, blk, mult), 16)
    open(fname, 'w').write(s)
if __name__ == '__main__':
    g = importlib.import_module(sys.argv[1])
    mk('ins_0.s', g, {}, 0, 9, 'avg', 0)
    mk('ins_1.s', g, {}, 0, 9, 'avg')
    mk('ins_2.s', g, {}, 0, 9, 'max')
    mk('ins_3.s', g, {}, 0, 3, 'avg')
    mk('ins_4.s', g, {}, 0, 1, 'avg')
```
